```python
import torch

def _softmax(x, axis=-1):
    return torch.softmax(x, dim=axis)
def _gelu(x):
    return torch.nn.functional.gelu(x, approximate="tanh")
def _silu(x):
    return torch.nn.functional.silu(x)
def _sigmoid(x):
    return torch.sigmoid(x)
def _layernorm(x, axis=-1, eps=1e-5):
    m = x.mean(dim=axis, keepdim=True)
    v = x.var(dim=axis, keepdim=True, unbiased=False)
    return (x - m) / torch.sqrt(v + eps)
def _scatter_add(tgt, idx, src, axis=0):
    return tgt.clone().index_add_(axis, idx, src)
def _segment_sum(src, seg, n):
    out = torch.zeros((n,) + src.shape[1:], dtype=src.dtype)
    return out.index_add_(0, seg, src)
def _pad(x, pw):
    flat = tuple(v for pair in reversed(pw) for v in pair)
    return torch.nn.functional.pad(x, flat)

kernel_name = 'interleave_layers__sliding_block__dense_activation_gelu__prompt'

def setup_inputs():

    _w = (lambda a: (lambda t: t.to(torch.bfloat16) if t.is_floating_point() else t)(torch.as_tensor(a)))
    def _A_setup():
        B, S, D = 1, 2048, 512
        return {
            "x": _w((lambda *s: torch.randn(*s, dtype=torch.bfloat16) * 0.05)(B, S, D)),
            "wqkv": _w((lambda *s: torch.randn(*s, dtype=torch.bfloat16) * 0.05)(D, 3 * D)),
            "wo": _w((lambda *s: torch.randn(*s, dtype=torch.bfloat16) * 0.05)(D, D)),
        }
    _A_in = _A_setup()

    def _B_setup():
        B, S, D, F = 1, 2048, 512, 1792
        return {
            "x": _w((lambda *s: torch.randn(*s, dtype=torch.bfloat16) * 0.05)(B, S, D)),
            "w1": _w((lambda *s: torch.randn(*s, dtype=torch.bfloat16) * 0.8)(D, F) * (D ** -0.5)),
            "b1": _w((lambda *s: torch.randn(*s, dtype=torch.bfloat16) * 0.8)(F) * 0.01),
            "w2": _w((lambda *s: torch.randn(*s, dtype=torch.bfloat16) * 0.8)(F, D) * (F ** -0.5)),
            "b2": _w((lambda *s: torch.randn(*s, dtype=torch.bfloat16) * 0.8)(D) * 0.01),
        }
    _B_in = _B_setup()

    return {
        "A_x": _A_in["x"],
        "A_wqkv": _A_in["wqkv"],
        "A_wo": _A_in["wo"],
        "B_x": _B_in["x"],
        "B_w1": _B_in["w1"],
        "B_b1": _B_in["b1"],
        "B_w2": _B_in["w2"],
        "B_b2": _B_in["b2"],
    }

def reference(A_x, A_wqkv, A_wo, B_x, B_w1, B_b1, B_w2, B_b2):
    def _A_ref(x, wqkv, wo):
        B, S, D = x.shape
        H = 32; Dh = D // H; W = 256
        qkv = (lambda x, *d: x.permute(*d))((x @ wqkv).reshape(B, S, 3, H, Dh), 2, 0, 3, 1, 4)
        q, k, v = qkv[0], qkv[1], qkv[2]
        scores = torch.einsum("bhqd,bhkd->bhqk", q, k) * (Dh ** -0.5)
        idx = torch.arange(S)
        mask = (idx[:, None] - idx[None, :] >= 0) & (idx[:, None] - idx[None, :] < W)
        scores = torch.where(mask[None, None], scores, -1e9)
        p = _softmax(scores, axis=-1)
        o = torch.einsum("bhqk,bhkd->bhqd", p, v)
        return (lambda x, *d: x.permute(*d))(o, 0, 2, 1, 3).reshape(B, S, D) @ wo

    def _B_ref(x, w1, b1, w2, b2):
        h = torch.einsum("bsd,df->bsf", x, w1) + b1
        h = _gelu(h)
        return torch.einsum("bsf,fd->bsd", h, w2) + b2

    x = A_x
    x = x + _A_ref(_layernorm(x, axis=-1), A_wqkv, A_wo)
    x = x + _B_ref(_layernorm(x, axis=-1), B_w1, B_b1, B_w2, B_b2)
    x = x + _A_ref(_layernorm(x, axis=-1), A_wqkv, A_wo)
    x = x + _B_ref(_layernorm(x, axis=-1), B_w1, B_b1, B_w2, B_b2)
    return x
```

```python
import re

TRANS = ("v_exp_f32", "v_log_f32", "v_rcp_f32", "v_rsq_f32", "v_sqrt_f32", "v_sin_f32", "v_cos_f32")
_REG = re.compile(r"^(-?)(?:abs\()?([vsa])(?:(\d+)|\[(\d+):(\d+)\])\)?$")

def regs_of(op):
    op = op.strip()
    if op in ("vcc", "exec", "m0", "scc"):
        return {(op, 0)}
    if op in ("vcc_lo", "vcc_hi"):
        return {("vcc", 0)}
    if op in ("exec_lo", "exec_hi"):
        return {("exec", 0)}
    m = _REG.match(op)
    if not m:
        return set()
    k = m.group(2)
    if m.group(3) is not None:
        return {(k, int(m.group(3)))}
    return {(k, i) for i in range(int(m.group(4)), int(m.group(5)) + 1)}

def split_ops(s):
    out, depth, cur = [], 0, ""
    for ch in s:
        if ch in "[(":
            depth += 1
        if ch in "])":
            depth -= 1
        if ch == "," and depth == 0:
            out.append(cur.strip()); cur = ""
        else:
            cur += ch
    if cur.strip():
        out.append(cur.strip())
    return out

class Ins:
    __slots__ = ("op", "cls", "w", "r", "a", "b", "c", "passes", "text", "sdata", "vmem_s")
    def __init__(self, text):
        self.text = text
        parts = text.split(None, 1)
        op = parts[0]; self.op = op
        rest = parts[1] if len(parts) > 1 else ""
        ops = split_ops(rest)
        clean = []
        mods = []
        for o in ops:
            toks = o.split()
            clean.append(toks[0] if toks else "")
            mods += toks[1:]
        self.w = set(); self.r = set(); self.a = self.b = self.c = set(); self.passes = 0
        self.sdata = set(); self.vmem_s = set()
        R = [regs_of(o) for o in clean]
        if op.startswith("v_mfma"):
            self.cls = "mfma"
            self.w = R[0]; self.a, self.b, self.c = R[1], R[2], R[3]
            self.r = R[1] | R[2] | R[3]
            self.passes = 8 if "32x32" in op else 4
        elif op.startswith("v_"):
            self.cls = "trans" if op.replace("_e32", "").replace("_e64", "") in TRANS else "valu"
            if op.startswith("v_permlane") and "swap" in op:
                self.cls = "permlane"
                self.w = R[0] | R[1]; self.r = R[0] | R[1]
            elif op.startswith(("v_add_co", "v_sub_co", "v_addc_co", "v_subb_co", "v_subrev_co")):
                self.w = R[0] | R[1]
                for x in R[2:]: self.r |= x
            else:
                self.w = R[0]
                for x in R[1:]: self.r |= x
                if op.startswith(("v_fmac", "v_dot2c", "v_pk_fmac")):
                    self.r |= R[0]
                if op.startswith("v_cmpx"):
                    self.w |= {("exec", 0)}
                if op.startswith("v_cndmask") and len(R) == 3:
                    self.r |= {("vcc", 0)}
                if op.startswith("v_dot2"):
                    self.cls = "dot"
        elif op.startswith(("buffer_", "global_")):
            self.cls = "vmem"
            is_lds = "lds" in mods or "_lds_" in op
            if op.startswith("buffer_"):
                if "load" in op and not is_lds:
                    self.w = R[0]
                    if "d16" in op: self.r |= R[0]
                    rs = R[1:]
                elif is_lds:
                    rs = R; self.r |= {("m0", 0)}
                else:
                    rs = R
                    if "x3" in op or "x4" in op: self.sdata = R[0]
                    if "atomic" in op and "sc0" in mods: self.w = R[0]
                for x in rs: self.r |= x
            else:
                if "load" in op and not is_lds:
                    self.w = R[0]; rs = R[1:]
                elif is_lds:
                    rs = R; self.r |= {("m0", 0)}
                elif "atomic" in op and "sc0" in mods:
                    self.w = R[0]; rs = R[1:]
                else:
                    rs = R
                    if "x3" in op or "x4" in op: self.sdata = R[1]
                for x in rs: self.r |= x
            self.vmem_s = {x for x in self.r if x[0] == "s"}
        elif op.startswith("ds_"):
            self.cls = "ds"
            if op.startswith(("ds_read", "ds_bpermute", "ds_permute", "ds_swizzle")) or "_rtn" in op:
                self.w = R[0]
                for x in R[1:]: self.r |= x
            else:
                for x in R: self.r |= x
        elif op.startswith("s_"):
            self.cls = "salu"
            if op.startswith(("s_cmp", "s_cbranch", "s_branch", "s_waitcnt", "s_nop", "s_barrier", "s_endpgm",
                              "s_setprio", "s_sleep", "s_bitcmp")):
                for x in R: self.r |= x
            else:
                self.w = R[0] if R else set()
                for x in R[1:]: self.r |= x
                if "saveexec" in op: self.w |= {("exec", 0)}
        else:
            raise ValueError("unknown instr: " + text)

def need(p, c):
    n = 0
    isv = lambda i: i.cls in ("valu", "trans", "permlane", "dot")
    vw = {x for x in p.w if x[0] in "va"}
    if p.cls == "mfma":
        t = {8: (10, 12, 12, 7), 4: (6, 8, 8, 3)}[p.passes]
        if c.cls == "mfma":
            if c.c & p.w:
                if not (c.c == p.w and c.passes == p.passes): n = max(n, t[0])
            if (c.a | c.b) & p.w: n = max(n, t[1])
            if (c.w & p.w) and not (c.c == p.w and c.w == p.w): n = max(n, t[2])
        elif isv(c) or c.cls in ("vmem", "ds"):
            if (c.r | c.w) & p.w: n = max(n, t[2])
        if isv(c) and (c.w & p.c): n = max(n, t[3])
        if c.cls in ("vmem", "ds") and (c.w & p.c): n = max(n, t[3])
    if isv(p):
        if c.cls == "mfma" and (c.r & vw): n = max(n, 2)
        if c.cls == "mfma" and ("exec", 0) in p.w: n = max(n, 4)
        if c.cls == "permlane" and (c.r & vw): n = max(n, 2)
        if c.op.startswith(("v_readlane", "v_readfirstlane")) and (c.r & vw): n = max(n, 1)
        if "dpp" in c.text and (c.r & vw): n = max(n, 2)
        sw = {x for x in p.w if x[0] in ("s", "vcc")}
        if sw:
            if isv(c) and (c.r & sw): n = max(n, 4 if c.op.startswith(("v_readlane", "v_writelane")) else 2)
            if c.cls == "vmem" and (c.r & sw): n = max(n, 5)
            if c.cls == "salu" and (c.r & sw): n = max(n, 2)
            if c.cls == "ds" and (c.r & sw): n = max(n, 5)
        if ("exec", 0) in p.w:
            if c.op.startswith(("v_readlane", "v_readfirstlane", "v_writelane")) or c.cls == "permlane": n = max(n, 4)
            if "dpp" in c.text: n = max(n, 5)
        if p.cls == "trans" and isv(c) and c.cls != "trans" and (c.r & vw): n = max(n, 1)
        if p.cls == "trans" and c.cls in ("vmem", "ds", "mfma") and (c.r & vw): n = max(n, 2)
        if p.cls == "dot":
            if c.cls == "dot" and c.op == p.op:
                srcs = split_ops(c.text.split(None, 1)[1])
                ab = regs_of(srcs[1].split()[0]) | regs_of(srcs[2].split()[0])
                if ab & vw: n = max(n, 3)
            elif (c.r | c.w) & vw: n = max(n, 3)
    if p.cls == "vmem" and p.sdata:
        if (c.w & p.sdata): n = max(n, 2)
    if p.cls == "salu" and ("m0", 0) in p.w and c.cls in ("vmem", "ds") and ("m0", 0) in c.r: n = max(n, 1)
    return n

MAXD = 14

class Asm:
    def __init__(self):
        self.lines = []
        self.hist = []
        self.pending = {}
        self.nops = 0
    def raw(self, text):
        self.lines.append(text)
    def comment(self, t):
        self.lines.append("    ; " + t)
    def _adv(self, n):
        for h in self.hist: h[1] += n
        self.hist = [h for h in self.hist if h[1] < MAXD]
    def __call__(self, text):
        for t in text.strip().split("\n"):
            t = t.strip()
            if t: self.emit(t)
    def emit(self, text):
        ins = Ins(text)
        if ins.op == "s_nop":
            self.lines.append("    " + text); self._adv(int(text.split()[1]) + 1); return
        pad = 0
        for p, d in self.hist:
            pad = max(pad, need(p, ins) - d)
        if pad > 0:
            self.nops += pad
            while pad > 0:
                k = min(pad, 16)
                self.lines.append("    s_nop %d" % (k - 1)); self._adv(k); pad -= k
        self.lines.append("    " + text)
        self._adv(1)
        self.hist.append([ins, 0])
        if ins.op.startswith(("s_cbranch", "s_branch")):
            lab = text.split()[1]
            self.pending.setdefault(lab, []).append([[p, d] for p, d in self.hist])
            if ins.op == "s_branch": self.hist = []
        if ins.op == "s_endpgm": self.hist = []
    def label(self, name, loop=False):
        self.lines.append(name + ":")
        for snap in self.pending.pop(name, []):
            cur = {id(p): h for h in self.hist for p in [h[0]]}
            for p, d in snap:
                if id(p) in cur: cur[id(p)][1] = min(cur[id(p)][1], d)
                else: self.hist.append([p, d])
    def flush(self):
        worst = 0
        for p, d in self.hist:
            if p.cls == "mfma": worst = max(worst, (12 if p.passes == 8 else 8) - d)
            elif p.cls != "salu": worst = max(worst, 5 - d)
            else: worst = max(worst, 1 - d)
        if worst > 0: self.emit("s_nop %d" % (worst - 1))
    def text(self):
        return "\n".join(self.lines) + "\n"

def v(i, n=1): return "v%d" % i if n == 1 else "v[%d:%d]" % (i, i + n - 1)
def a(i, n=1): return "a%d" % i if n == 1 else "a[%d:%d]" % (i, i + n - 1)
def s(i, n=1): return "s%d" % i if n == 1 else "s[%d:%d]" % (i, i + n - 1)

def kdesc(name, vgpr, sgpr=102, accum=None):
    if accum is None: accum = min(256, (vgpr + 3) // 4 * 4)
    return f""".p2align 6
.amdhsa_kernel {name}
  .amdhsa_next_free_vgpr {vgpr}
  .amdhsa_next_free_sgpr {sgpr}
  .amdhsa_accum_offset {accum}
  .amdhsa_group_segment_fixed_size 0
  .amdhsa_kernarg_size 88
  .amdhsa_user_sgpr_count 2
  .amdhsa_user_sgpr_kernarg_segment_ptr 1
  .amdhsa_system_sgpr_workgroup_id_x 1
.end_amdhsa_kernel
"""
```

```python
import sys, struct
from asmlib import *

NAME = "interleave_layers__sliding_block__dense_activation_gelu__prompt"
def f2u(x): return "0x%08x" % struct.unpack("<I", struct.pack("<f", x))[0]

XF0, X1F, X2F, QF, KF, VF, OF, HF = 0x0, 0x200000, 0x400000, 0x600000, 0x800000, 0xA00000, 0xC00000, 0xE00000
WQF, WOF, W1F, W2F, TAB = 0x1500000, 0x1680000, 0x1700000, 0x18C0000, 0x1A80000
CSQ, TAB1, B2F = TAB, TAB + 0x2000, TAB + 0x6000
WS_USED = 0x1B00000
LOG2E = 1.4426950408889634
QSCALE = 0.25 * LOG2E
GA = -2.0 * LOG2E * 0.7978845608028654
GB = GA * 0.044715

class VM:
    def __init__(self, A): self.A = A; self.q = []
    def issue(self, text, tag=None):
        self.A(text); self.q.append(tag)
    def wait(self, tag, extra=""):
        idx = max(i for i, t in enumerate(self.q) if t == tag)
        n = len(self.q) - 1 - idx
        assert n <= 63
        self.A("s_waitcnt vmcnt(%d)%s" % (n, extra))
        self.q = self.q[idx + 1:]

def entry(A, name):
    A.raw(".globl %s\n.p2align 8\n.type %s,@function\n%s:" % (name, name, name))
    A.hist = []

def prologue(A, nwg, endl):
    A(f"""s_cmp_ge_u32 s2, {nwg}
    s_cbranch_scc1 {endl}
    s_load_dwordx2 s[4:5], s[0:1], 80
    v_and_b32 v1, 63, v0
    v_lshrrev_b32 v2, 6, v0
    v_lshlrev_b32 v1, 4, v1
    v_readfirstlane_b32 s12, v2
    s_mov_b32 s10, {WS_USED}
    s_mov_b32 s11, 0x00020000
    s_and_b32 s13, s2, 7
    s_lshr_b32 s14, s2, 3
    s_waitcnt lgkmcnt(0)
    s_mov_b32 s8, s4
    s_mov_b32 s9, s5""")

def k0(A):
    entry(A, "k0_kernel")
    A(f"""s_cmp_ge_u32 s2, 249
    s_cbranch_scc1 K0_END
    s_load_dwordx4 s[16:19], s[0:1], 0
    s_load_dwordx2 s[20:21], s[0:1], 16
    s_load_dwordx4 s[24:27], s[0:1], 32
    s_load_dwordx4 s[28:31], s[0:1], 48
    s_load_dwordx2 s[4:5], s[0:1], 80
    v_and_b32 v3, 63, v0
    v_lshrrev_b32 v2, 6, v0
    v_lshlrev_b32 v1, 4, v3
    v_readfirstlane_b32 s12, v2
    v_and_b32 v4, 31, v0
    v_bfe_u32 v5, v0, 5, 1
    s_mov_b32 s10, {WS_USED}
    s_mov_b32 s11, 0x00020000
    s_mov_b32 s35, 0x00020000
    s_waitcnt lgkmcnt(0)
    s_mov_b32 s8, s4
    s_mov_b32 s9, s5
    s_cmp_lt_u32 s2, 64
    s_cbranch_scc1 K0_X
    s_cmp_eq_u32 s2, 248
    s_cbranch_scc1 K0_B""")
    A(f"""s_cmp_lt_u32 s2, 112
    s_cbranch_scc1 K0_WQ
    s_cmp_lt_u32 s2, 128
    s_cbranch_scc1 K0_WO
    s_cmp_lt_u32 s2, 184
    s_cbranch_scc1 K0_W1
    s_mov_b32 s32, s28
    s_mov_b32 s33, s29
    s_mov_b32 s34, {1792*512*2}
    s_mov_b32 s36, 1024
    s_sub_u32 s37, s2, 184
    s_and_b32 s38, s37, 3
    s_mul_i32 s38, s38, 28
    s_lshr_b32 s37, s37, 2
    s_mov_b32 s39, 7
    s_mov_b32 s40, {W2F}
    s_mov_b32 s41, 112
    s_mov_b32 s42, 0
    s_branch K0_W""")
    A.label("K0_WQ")
    A(f"""s_mov_b32 s32, s18
    s_mov_b32 s33, s19
    s_mov_b32 s34, {512*1536*2}
    s_mov_b32 s36, 3072
    s_sub_u32 s37, s2, 64
    s_mov_b32 s38, 0
    s_mov_b32 s39, 8
    s_mov_b32 s40, {WQF}
    s_mov_b32 s41, 32
    s_lshl_b32 s42, s37, 7
    s_add_u32 s42, s42, {CSQ}
    s_branch K0_W""")
    A.label("K0_WO")
    A(f"""s_mov_b32 s32, s20
    s_mov_b32 s33, s21
    s_mov_b32 s34, {512*512*2}
    s_mov_b32 s36, 1024
    s_sub_u32 s37, s2, 112
    s_mov_b32 s38, 0
    s_mov_b32 s39, 8
    s_mov_b32 s40, {WOF}
    s_mov_b32 s41, 32
    s_mov_b32 s42, 0
    s_branch K0_W""")
    A.label("K0_W1")
    A(f"""s_mov_b32 s32, s24
    s_mov_b32 s33, s25
    s_mov_b32 s34, {512*1792*2}
    s_mov_b32 s36, 3584
    s_sub_u32 s37, s2, 128
    s_mov_b32 s38, 0
    s_mov_b32 s39, 8
    s_mov_b32 s40, {W1F}
    s_mov_b32 s41, 32
    s_lshr_b32 s42, s37, 2
    s_lshl_b32 s42, s42, 10
    s_and_b32 s43, s37, 3
    s_lshl_b32 s43, s43, 7
    s_add_u32 s42, s42, s43
    s_add_u32 s42, s42, {TAB1}""")
    A.label("K0_W")
    A(f"""s_mul_i32 s43, s12, s39
    s_add_u32 s43, s43, s38
    s_mul_i32 s44, s43, s36
    s_lshl_b32 s44, s44, 4
    s_lshl_b32 s45, s37, 6
    s_add_u32 s44, s44, s45
    s_mul_i32 s45, s37, s41
    s_add_u32 s45, s45, s43
    s_lshl_b32 s45, s45, 10
    s_add_u32 s45, s45, s40
    s_lshl_b32 s46, s36, 4
    v_lshlrev_b32 v6, 2, v5
    v_mul_lo_u32 v6, v6, s36
    v_lshl_add_u32 v6, v4, 1, v6""")
    for j in range(8):
        r = (j // 4) * 8 + j % 4
        A(f"s_mul_i32 s47, s36, {r}")
        A(f"v_add_u32 v{8+j}, s47, v6")
    A("v_mov_b32 v7, 0\nv_mov_b32 v16, 0x3f803f80")
    for ks in range(8):
        if ks == 7:
            A("s_cmp_eq_u32 s39, 7\ns_cbranch_scc1 K0_W7")
        for j in range(8):
            A(f"buffer_load_ushort v{32+ks*8+j}, v{8+j}, s[32:35], s44 offen")
        A("s_add_u32 s44, s44, s46")
    A.label("K0_W7")
    A("s_waitcnt vmcnt(0)")
    for ks in range(8):
        if ks == 7:
            A("s_cmp_eq_u32 s39, 7\ns_cbranch_scc1 K0_END")
        for d in range(4):
            A(f"v_lshl_or_b32 v{96+ks*4+d}, v{32+ks*8+2*d+1}, 16, v{32+ks*8+2*d}")
        for d in range(4):
            A(f"v_dot2_f32_bf16 v7, v{96+ks*4+d}, v16, v7")
        A(f"buffer_store_dwordx4 {v(96+ks*4,4)}, v1, s[8:11], s45 offen")
        A("s_add_u32 s45, s45, 1024")
    A(f"""s_cmp_eq_u32 s42, 0
    s_cbranch_scc1 K0_END
    v_mov_b32 v17, v7
    v_permlane32_swap_b32 v7, v17
    v_add_f32 v7, v7, v17
    v_lshlrev_b32 v18, 2, v0
    ds_write_b32 v18, v7
    s_waitcnt lgkmcnt(0)
    s_barrier
    s_cmp_lg_u32 s12, 0
    s_cbranch_scc1 K0_END
    ds_read_b32 v19, v18 offset:256
    ds_read_b32 v20, v18 offset:512
    ds_read_b32 v21, v18 offset:768
    s_waitcnt lgkmcnt(0)
    v_add_f32 v7, v7, v19
    v_add_f32 v20, v20, v21
    v_add_f32 v7, v7, v20
    v_lshlrev_b32 v18, 2, v4
    buffer_store_dword v7, v18, s[8:11], s42 offen
    s_endpgm""")
    A.label("K0_X")
    A(f"""s_mov_b32 s32, s16
    s_mov_b32 s33, s17
    s_mov_b32 s34, {2048*512*2}
    v_lshlrev_b32 v6, 10, v4
    v_lshl_add_u32 v6, v5, 3, v6
    s_lshl_b32 s44, s2, 15
    s_lshl_b32 s45, s12, 8
    s_add_u32 s44, s44, s45
    s_lshl_b32 s45, s2, 15
    s_lshl_b32 s46, s12, 13
    s_add_u32 s45, s45, s46
    s_add_u32 s45, s45, {XF0}""")
    for ks in range(8):
        A(f"buffer_load_dwordx2 {v(32+ks*4,2)}, v6, s[32:35], s44 offen offset:{ks*32}")
        A(f"buffer_load_dwordx2 {v(34+ks*4,2)}, v6, s[32:35], s44 offen offset:{ks*32+16}")
    A("s_waitcnt vmcnt(0)")
    for ks in range(8):
        A(f"buffer_store_dwordx4 {v(32+ks*4,4)}, v1, s[8:11], s45 offen")
        A("s_add_u32 s45, s45, 1024")
    A("s_endpgm")
    A.label("K0_B")
    A(f"""s_mov_b32 s32, s26
    s_mov_b32 s33, s27
    s_mov_b32 s34, {1792*2}
    v_lshlrev_b32 v6, 1, v0
    v_lshrrev_b32 v7, 7, v0
    v_lshlrev_b32 v7, 10, v7
    v_and_b32 v8, 127, v0
    v_lshl_add_u32 v7, v8, 2, v7
    s_mov_b32 s45, {TAB1 + 512}""")
    for i in range(7):
        A(f"buffer_load_ushort v{16+i}, v6, s[32:35], 0 offen offset:{i*512}")
    A("s_waitcnt vmcnt(0)")
    for i in range(7):
        A(f"v_lshlrev_b32 v{16+i}, 16, v{16+i}")
        A(f"buffer_store_dword v{16+i}, v7, s[8:11], s45 offen")
        A("s_add_u32 s45, s45, 2048")
    A(f"""s_mov_b32 s32, s30
    s_mov_b32 s33, s31
    s_mov_b32 s34, 1024
    v_lshlrev_b32 v7, 2, v0
    s_mov_b32 s45, {B2F}
    buffer_load_ushort v16, v6, s[32:35], 0 offen
    buffer_load_ushort v17, v6, s[32:35], 0 offen offset:512
    s_waitcnt vmcnt(0)
    v_lshlrev_b32 v16, 16, v16
    v_lshlrev_b32 v17, 16, v17
    buffer_store_dword v16, v7, s[8:11], s45 offen
    buffer_store_dword v17, v7, s[8:11], s45 offen offset:1024""")
    A.label("K0_END")
    A("s_endpgm")

def ln_stats(A, S0, S1, Q0, Q1, T0, T1):
    A(f"""v_add_f32 v{S0}, v{S0}, v{S1}
    v_add_f32 v{Q0}, v{Q0}, v{Q1}
    v_mov_b32 v{T0}, v{S0}
    v_mov_b32 v{T1}, v{Q0}
    v_permlane32_swap_b32 v{S0}, v{T0}
    v_permlane32_swap_b32 v{Q0}, v{T1}
    v_add_f32 v{S0}, v{S0}, v{T0}
    v_add_f32 v{Q0}, v{Q0}, v{T1}
    v_mul_f32 v{T0}, {f2u(1/512)}, v{S0}
    v_mul_f32 v{T1}, {f2u(1/512)}, v{Q0}
    v_fma_f32 v{T1}, -v{T0}, v{T0}, v{T1}
    v_max_f32 v{T1}, 0, v{T1}
    v_add_f32 v{T1}, {f2u(1e-5)}, v{T1}
    v_rsq_f32 v{S0}, v{T1}
    v_mul_f32 v{Q0}, v{T0}, v{S0}
    v_sub_f32 v{Q0}, 0, v{Q0}""")

def gemm128_main(A, vm, NB, ACC, XF, WR, swap_last, wsrc_stride, after_first_wait=None, PF=6):
    NR = 8
    def issue_stage(st):
        for b in range(NB):
            A(f"s_add_u32 m0, s17, {(b*32+8*st)*1024}")
            A(f"s_add_u32 s18, s16, {b*wsrc_stride + st*8192}")
            vm.issue("buffer_load_dwordx4 v1, s[8:11], s18 offen lds", ("st", st))
            vm.issue("buffer_load_dwordx4 v1, s[8:11], s18 offen offset:1024 lds", ("st", st))
        for g in range(2):
            A(f"s_add_u32 s18, s15, {(st*8+g*4)*1024}")
            for q in range(4):
                ks = st*8 + g*4 + q
                vm.issue(f"buffer_load_dwordx4 {v(XF+ks*4,4)}, v1, s[8:11], s18 offen offset:{q*1024}", ("st", st))
    late = NB == 4
    for st in range(3 if late else 4): issue_stage(st)
    A("v_mov_b32 v3, 0x3f803f80\nv_mov_b32 v4, 0\nv_mov_b32 v5, 0\nv_mov_b32 v6, 0\nv_mov_b32 v7, 0")
    A("v_add_u32 v2, 0x10000, v1")
    frags = [(ks, b) for ks in range(32) for b in range(NB)]
    nf = len(frags)
    def rd(f):
        ks, b = frags[f]
        if b == 0 and ks % 8 == 0:
            vm.wait(("st", ks // 8))
            A("s_barrier")
            if ks == 0:
                if late: issue_stage(3)
                if after_first_wait: after_first_wait()
        off = (b*32 + ks)*1024
        base = "v1" if off < 65536 else "v2"
        A(f"ds_read_b128 {v(WR+(f%NR)*4,4)}, {base} offset:{off % 65536}")
    for f in range(PF): rd(f)
    for f in range(nf):
        ks, b = frags[f]
        A(f"s_waitcnt lgkmcnt({min(PF-1, nf-1-f)})")
        w = v(WR+(f%NR)*4, 4); x = v(XF+ks*4, 4); acc = v(ACC+b*16, 16)
        c = "0" if ks == 0 else acc
        if swap_last and b == NB-1: A(f"v_mfma_f32_32x32x16_bf16 {acc}, {x}, {w}, {c}")
        else: A(f"v_mfma_f32_32x32x16_bf16 {acc}, {w}, {x}, {c}")
        if f + PF < nf: rd(f + PF)
        dots = [(d, t) for d in range(4) for t in range(2)]
        lo, hi = (8*b)//NB, (8*(b+1))//NB
        for d, t in dots[lo:hi]:
            r = XF + ks*4 + d
            if t == 0: A(f"v_dot2_f32_bf16 v{4+(d&1)}, v{r}, v3, v{4+(d&1)}")
            else: A(f"v_dot2_f32_bf16 v{6+(d&1)}, v{r}, v{r}, v{6+(d&1)}")

def p1(A):
    entry(A, "p1a_kernel")
    A(f"s_mov_b32 s20, {XF0}\ns_branch P1_BODY")
    entry(A, "p1b_kernel")
    A(f"s_mov_b32 s20, {X2F}")
    A.label("P1_BODY")
    prologue(A, 256, "P1_END")
    ACC, XF, WR, CQ, CK = 16, 64, 192, 224, 240
    vm = VM(A)
    A(f"""s_and_b32 s21, s14, 1
    s_lshl_b32 s22, s13, 1
    s_add_u32 s21, s21, s22
    s_lshr_b32 s22, s14, 1
    s_lshl_b32 s21, s21, 2
    s_add_u32 s21, s21, s12
    s_lshl_b32 s15, s21, 15
    s_add_u32 s15, s15, s20
    s_lshl_b32 s17, s12, 11
    s_lshl_b32 s16, s22, 15
    s_add_u32 s16, s16, s17
    s_add_u32 s16, s16, {WQF}""")
    def extra():
        A(f"""v_bfe_u32 v8, v0, 5, 1
        v_lshlrev_b32 v9, 4, v8
        v_and_b32 v10, 31, v0
        v_lshlrev_b32 v11, 2, v10
        s_lshl_b32 s23, s22, 7
        s_add_u32 s23, s23, {CSQ}""")
        for g in range(4):
            vm.issue(f"buffer_load_dwordx4 {v(CQ+g*4,4)}, v9, s[8:11], s23 offen offset:{g*32}", "cs")
        for g in range(4):
            vm.issue(f"buffer_load_dwordx4 {v(CK+g*4,4)}, v9, s[8:11], s23 offen offset:{2048+g*32}", "cs")
        A("s_add_u32 s23, s23, 4096")
        vm.issue(f"buffer_load_dword v12, v11, s[8:11], s23 offen", "cs")
    gemm128_main(A, vm, 3, ACC, XF, WR, True, 16*32768, extra)
    ln_stats(A, 4, 5, 6, 7, 14, 15)
    A(f"""s_lshl_b32 s23, s12, 8
    s_add_u32 s23, s23, 98304
    v_add_u32 v11, s23, v11
    v_add_u32 v9, s23, v9
    ds_write_b32 v11, v4
    ds_write_b32 v11, v6 offset:128
    v_mul_f32 v14, {f2u(QSCALE)}, v4
    v_mul_f32 v2, {f2u(QSCALE)}, v6
    s_waitcnt lgkmcnt(0)""")
    RS, NM = XF, XF + 16
    for g in range(4):
        A(f"ds_read_b128 {v(RS+g*4,4)}, v9 offset:{g*32}")
        A(f"ds_read_b128 {v(NM+g*4,4)}, v9 offset:{128+g*32}")
    vm.wait("cs")
    A(f"""s_lshl_b32 s24, s22, 7
    s_add_u32 s24, s24, s21
    s_lshl_b32 s24, s24, 10""")
    P = XF + 32
    for b, (C, rr, nn, base) in enumerate(((CQ, 14, 2, QF), (CK, 4, 6, KF))):
        for i in range(0, 16, 2):
            A(f"v_pk_mul_f32 {v(C+i,2)}, {v(C+i,2)}, {v(nn,2)} op_sel_hi:[1,0]")
        for i in range(0, 16, 2):
            A(f"v_pk_fma_f32 {v(C+i,2)}, {v(ACC+b*16+i,2)}, {v(rr,2)}, {v(C+i,2)} op_sel_hi:[1,0,1]")
        for d in range(8):
            A(f"v_cvt_pk_bf16_f32 v{P+b*8+d}, v{C+2*d}, v{C+2*d+1}")
        A(f"s_add_u32 s25, s24, {base}")
        A(f"buffer_store_dwordx4 {v(P+b*8,4)}, v1, s[8:11], s25 offen")
        A(f"s_add_u32 s25, s24, {base + 65536}")
        A(f"buffer_store_dwordx4 {v(P+b*8+4,4)}, v1, s[8:11], s25 offen")
    A(f"""s_waitcnt lgkmcnt(0)
    v_lshrrev_b32 v9, 4, v10
    v_lshlrev_b32 v9, 16, v9
    v_and_b32 v10, 15, v10
    v_lshl_add_u32 v10, v8, 4, v10
    v_lshl_add_u32 v9, v10, 4, v9
    s_add_u32 s25, s24, {VF}""")
    for i in range(0, 16, 2):
        A(f"v_pk_mul_f32 {v(NM+i,2)}, {v(NM+i,2)}, {v(12,2)} op_sel_hi:[1,0]")
    for i in range(0, 16, 2):
        A(f"v_pk_fma_f32 {v(NM+i,2)}, {v(ACC+32+i,2)}, {v(RS+i,2)}, {v(NM+i,2)}")
    for d in range(8):
        A(f"v_cvt_pk_bf16_f32 v{P+16+d}, v{NM+2*d}, v{NM+2*d+1}")
    A(f"buffer_store_dwordx4 {v(P+16,4)}, v9, s[8:11], s25 offen")
    A(f"buffer_store_dwordx4 {v(P+20,4)}, v9, s[8:11], s25 offen offset:512")
    A.label("P1_END")
    A("s_endpgm")

def p4(A):
    entry(A, "p4_kernel")
    prologue(A, 224, "P4_END")
    ACC, XF, WR = 16, 80, 208
    vm = VM(A)
    A(f"""s_and_b32 s21, s14, 1
    s_lshl_b32 s22, s13, 1
    s_add_u32 s21, s21, s22
    s_lshr_b32 s22, s14, 1
    s_lshl_b32 s21, s21, 2
    s_add_u32 s21, s21, s12
    s_lshl_b32 s15, s21, 15
    s_add_u32 s15, s15, {X1F}
    s_lshl_b32 s17, s12, 11
    s_lshl_b32 s16, s22, 17
    s_add_u32 s16, s16, s17
    s_add_u32 s16, s16, {W1F}
    s_lshl_b32 s23, s22, 10
    s_add_u32 s23, s23, {TAB1}
    s_mov_b32 m0, 131072""")
    vm.issue("buffer_load_dwordx4 v1, s[8:11], s23 offen lds", ("st", 0))
    gemm128_main(A, vm, 4, ACC, XF, WR, False, 32768)
    ln_stats(A, 4, 5, 6, 7, 14, 15)
    A(f"""v_bfe_u32 v8, v0, 5, 1
    v_lshlrev_b32 v9, 4, v8
    v_add_u32 v9, 0x20000, v9
    v_mov_b32 v10, {f2u(GA)}
    v_mov_b32 v12, {f2u(GB)}
    s_mul_i32 s24, s21, 112
    s_lshl_b32 s25, s22, 3
    s_add_u32 s24, s24, s25
    s_lshl_b32 s24, s24, 10
    s_add_u32 s24, s24, {HF}""")
    CS = XF
    for b in range(4):
        for g in range(4):
            A(f"ds_read_b128 {v(CS+b*32+g*4,4)}, v9 offset:{b*128+g*32}")
            A(f"ds_read_b128 {v(CS+b*32+16+g*4,4)}, v9 offset:{512+b*128+g*32}")
        A("s_waitcnt lgkmcnt(0)")
    T = WR
    for b in range(4):
        C = CS + b*32; B = C + 16; acc = ACC + b*16
        for i in range(0, 16, 2):
            A(f"v_pk_fma_f32 {v(C+i,2)}, {v(C+i,2)}, {v(6,2)}, {v(B+i,2)} op_sel_hi:[1,0,1]")
        for i in range(0, 16, 2):
            A(f"v_pk_fma_f32 {v(acc+i,2)}, {v(acc+i,2)}, {v(4,2)}, {v(C+i,2)} op_sel_hi:[1,0,1]")
        for i in range(0, 16, 2):
            A(f"v_pk_mul_f32 {v(C+i,2)}, {v(acc+i,2)}, {v(acc+i,2)}")
        for i in range(0, 16, 2):
            A(f"v_pk_fma_f32 {v(C+i,2)}, {v(C+i,2)}, {v(12,2)}, {v(10,2)} op_sel_hi:[1,0,0]")
        for i in range(0, 16, 2):
            A(f"v_pk_mul_f32 {v(C+i,2)}, {v(C+i,2)}, {v(acc+i,2)}")
        for i in range(16):
            A(f"v_exp_f32 v{C+i}, v{C+i}")
        for i in range(0, 16, 2):
            A(f"v_pk_add_f32 {v(C+i,2)}, {v(C+i,2)}, 1.0 op_sel_hi:[1,0]")
        for i in range(16):
            A(f"v_rcp_f32 v{C+i}, v{C+i}")
        for i in range(0, 16, 2):
            A(f"v_pk_mul_f32 {v(C+i,2)}, {v(C+i,2)}, {v(acc+i,2)}")
        for d in range(8):
            A(f"v_cvt_pk_bf16_f32 v{T+b*8+d}, v{C+2*d}, v{C+2*d+1}")
        A(f"buffer_store_dwordx4 {v(T+b*8,4)}, v1, s[8:11], s24 offen offset:0")
        A(f"buffer_store_dwordx4 {v(T+b*8+4,4)}, v1, s[8:11], s24 offen offset:1024")
        if b < 3: A("s_add_u32 s24, s24, 2048")
    A.label("P4_END")
    A("s_endpgm")

def gemm64(A, tag, KS, ASRC, WSRC, bias, entries):
    for i, (name, res, out) in enumerate(entries):
        entry(A, name)
        A(f"s_mov_b32 s20, {res}\ns_mov_b32 s21, {out if out is not None else 0xffffffff}")
        if i + 1 < len(entries): A(f"s_branch {tag}_BODY")
    A.label(f"{tag}_BODY")
    A("s_load_dwordx2 s[6:7], s[0:1], 64")
    prologue(A, 256, f"{tag}_END")
    vm = VM(A)
    NS = KS // 4
    DEPTH = min(NS, 14)
    ACC = 0
    RING = 16
    RES, BIA = 4, 240
    A(f"""s_and_b32 s22, s14, 3
    s_lshl_b32 s23, s13, 2
    s_add_u32 s22, s22, s23
    s_lshl_b32 s22, s22, 1
    s_lshr_b32 s23, s14, 2
    s_lshl_b32 s23, s23, 1
    s_mul_i32 s24, s12, {NS*1024}
    s_mul_i32 s15, s22, {KS*1024}
    s_add_u32 s15, s15, s24
    s_add_u32 s15, s15, {ASRC}
    s_add_u32 s16, s15, {KS*1024}
    s_mul_i32 s17, s23, {KS*1024}
    s_add_u32 s17, s17, s24
    s_add_u32 s17, s17, {WSRC}
    s_add_u32 s18, s17, {KS*1024}""")
    def issue(st):
        r = RING + (st % DEPTH) * 16
        q = st % 4
        for i, sb in enumerate((15, 17, 16, 18)):
            vm.issue(f"buffer_load_dwordx4 {v(r+i*4,4)}, v1, s[8:11], s{sb} offen offset:{q*1024}", ("k", st))
        if q == 3:
            for sb in (15, 16, 17, 18): A(f"s_add_u32 s{sb}, s{sb}, 4096")
    for st in range(DEPTH): issue(st)
    A(f"""s_lshr_b32 s25, s12, 1
    s_add_u32 s25, s25, s22
    s_and_b32 s26, s12, 1
    s_add_u32 s26, s26, s23
    s_lshl_b32 s27, s25, 15
    s_lshl_b32 s28, s26, 11
    s_add_u32 s27, s27, s28
    s_add_u32 s28, s27, s20
    v_bfe_u32 v2, v0, 5, 1
    v_lshlrev_b32 v3, 4, v2
    s_lshl_b32 s29, s26, 7
    s_add_u32 s29, s29, {B2F}""")
    def late():
        vm.issue(f"buffer_load_dwordx4 {v(RES,4)}, v1, s[8:11], s28 offen", "res")
        vm.issue(f"buffer_load_dwordx4 {v(RES+4,4)}, v1, s[8:11], s28 offen offset:1024", "res")
        if bias:
            for g in range(4):
                vm.issue(f"buffer_load_dwordx4 {v(BIA+g*4,4)}, v3, s[8:11], s29 offen offset:{g*32}", "res")
    if DEPTH == NS: late()
    for st in range(NS):
        r = RING + (st % DEPTH) * 16
        vm.wait(("k", st))
        a0, w0, a1, w1 = (v(r+i*4, 4) for i in range(4))
        for t, (aa, ww) in enumerate(((a0, w0), (a0, w1), (a1, w0), (a1, w1))):
            acc = a(ACC + t*16, 16)
            A(f"v_mfma_f32_32x32x16_bf16 {acc}, {ww}, {aa}, {'0' if st == 0 else acc}")
        if st + DEPTH < NS:
            issue(st + DEPTH)
            if st + DEPTH == NS - 1: late()
    for w in range(4):
        if w < 3: A(f"s_cmp_lg_u32 s12, {w}\ns_cbranch_scc1 {tag}_W{w+1}")
        for d in range(1, 4):
            t = (w + d) & 3
            slot = (w - t - 1) & 3
            for q in range(4):
                A(f"ds_write_b128 v1, {a(ACC+t*16+q*4,4)} offset:{(t*3+slot)*4096+q*1024}")
        for i in range(16):
            A(f"v_accvgpr_read_b32 v{16+i}, a{ACC+w*16+i}")
        if w < 3:
            A(f"s_branch {tag}_RED")
            A.label(f"{tag}_W{w+1}")
    A.label(f"{tag}_RED")
    A(f"""s_mul_i32 s30, s12, 12288
    v_add_u32 v12, s30, v1
    s_waitcnt lgkmcnt(0)
    s_barrier""")
    for sl in range(3):
        for q in range(4):
            A(f"ds_read_b128 {v(32+sl*16+q*4,4)}, v12 offset:{sl*4096+q*1024}")
    vm.wait("res")
    for d in range(8):
        A(f"v_lshlrev_b32 v{80+2*d}, 16, v{RES+d}")
        A(f"v_and_b32 v{81+2*d}, 0xffff0000, v{RES+d}")
    for i in range(0, 16, 2):
        A(f"v_pk_add_f32 {v(16+i,2)}, {v(16+i,2)}, {v(80+i,2)}")
    if bias:
        for i in range(0, 16, 2):
            A(f"v_pk_add_f32 {v(16+i,2)}, {v(16+i,2)}, {v(BIA+i,2)}")
    for sl in range(3):
        A(f"s_waitcnt lgkmcnt({8-4*sl})")
        for i in range(0, 16, 2):
            A(f"v_pk_add_f32 {v(16+i,2)}, {v(16+i,2)}, {v(32+sl*16+i,2)}")
    for d in range(8):
        A(f"v_cvt_pk_bf16_f32 v{96+d}, v{16+2*d}, v{16+2*d+1}")
    if any(e[2] is None for e in entries):
        A(f"s_cmp_eq_u32 s21, -1\ns_cbranch_scc1 {tag}_FIN")
    A(f"""s_add_u32 s27, s27, s21
    buffer_store_dwordx4 {v(96,4)}, v1, s[8:11], s27 offen
    buffer_store_dwordx4 {v(100,4)}, v1, s[8:11], s27 offen offset:1024
    s_endpgm""")
    if any(e[2] is None for e in entries):
        A.label(f"{tag}_FIN")
        A(f"""s_mov_b32 s32, s6
        s_mov_b32 s33, s7
        s_mov_b32 s34, {2048*512*2}
        s_mov_b32 s35, 0x00020000
        v_permlane32_swap_b32 v96, v98
        v_permlane32_swap_b32 v97, v99
        v_permlane32_swap_b32 v100, v102
        v_permlane32_swap_b32 v101, v103
        v_and_b32 v12, 31, v0
        v_lshlrev_b32 v12, 10, v12
        v_add_u32 v12, v12, v3
        s_lshl_b32 s27, s25, 15
        s_lshl_b32 s28, s26, 6
        s_add_u32 s27, s27, s28
        buffer_store_dwordx4 {v(96,4)}, v12, s[32:35], s27 offen
        buffer_store_dwordx4 {v(100,4)}, v12, s[32:35], s27 offen offset:32""")
    A.label(f"{tag}_END")
    A("s_endpgm")

def p2(A):
    entry(A, "p2_kernel")
    prologue(A, 256, "P2_END")
    Q, KR, SA, SB, MD, MF, NM, O, VA, VB, P0, P1 = 4, 8, 48, 64, 80, 96, 112, 128, 144, 152, 160, 164
    NEG = f2u(-1e30)
    A(f"""s_lshl_b32 s15, s14, 6
    s_lshl_b32 s16, s13, 3
    s_add_u32 s15, s15, s16
    s_add_u32 s16, s15, s12
    s_lshl_b32 s16, s16, 10
    s_add_u32 s16, s16, {QF}
    buffer_load_dwordx4 {v(Q,4)}, v1, s[8:11], s16 offen
    s_lshl_b32 s17, s12, 1
    s_add_u32 s15, s15, s17
    s_lshl_b32 s15, s15, 10
    s_lshl_b32 s17, s12, 11
    s_lshl_b32 s18, s13, 3
    s_add_u32 s18, s18, s12
    s_min_u32 s19, s18, 8
    s_cmp_lt_u32 s18, 4
    s_cbranch_scc1 P2_NOLD
    s_mov_b32 m0, s17
    s_add_u32 s16, s15, {KF - 8192}
    buffer_load_dwordx4 v1, s[8:11], s16 offen lds
    buffer_load_dwordx4 v1, s[8:11], s16 offen offset:1024 lds
    s_add_u32 m0, s17, 16384
    s_add_u32 s16, s15, {VF - 8192}
    buffer_load_dwordx4 v1, s[8:11], s16 offen lds
    buffer_load_dwordx4 v1, s[8:11], s16 offen offset:1024 lds""")
    A.label("P2_NOLD")
    A(f"""v_and_b32 v2, 31, v0
    v_bfe_u32 v3, v0, 5, 1
    v_lshlrev_b32 v44, 2, v3
    v_sub_u32 v44, v2, v44
    v_mov_b32 v45, {NEG}""")
    for i in range(16):
        A(f"v_cmp_le_i32 {s(32+2*i,2)}, {8*(i//4)+i%4}, v44")
    for i in range(16):
        A(f"v_cndmask_b32 v{MD+i}, v45, 0, {s(32+2*i,2)}")
        A(f"v_cndmask_b32 v{MF+i}, 0, v45, {s(32+2*i,2)}")
    for i in range(16):
        A(f"v_mov_b32 v{VA+i}, 0x3f803f80")
    A(f"""s_lshl_b32 s17, s12, 10
    v_add_u32 v46, s17, v1
    v_and_b32 v47, 15, v0
    v_lshl_add_u32 v47, v3, 4, v47
    v_lshlrev_b32 v47, 4, v47
    v_add_u32 v47, s17, v47
    s_mov_b32 s20, 0x0000ffff
    s_mov_b32 s21, 0x0000ffff
    s_waitcnt vmcnt(0)
    s_barrier""")
    for d in range(9):
        A(f"ds_read_b128 {v(KR+d*4,4)}, v46 offset:{(8-d)*1024}")
    def vread(d):
        b = VA if d % 2 == 0 else VB
        A("s_mov_b64 exec, s[20:21]")
        A(f"ds_read_b128 {v(b,4)}, v47 offset:{16384+(8-d)*1024}")
        A(f"ds_read_b128 {v(b+4,4)}, v47 offset:{16384+(8-d)*1024+512}")
        A("s_mov_b64 exec, -1")
    vread(0)
    S = lambda d: SA if d % 2 == 0 else SB
    def smfma(d, cs):
        A(f"v_mfma_f32_32x32x16_bf16 {v(S(d),16)}, {v(KR+d*4,4)}, {v(Q,4)}, {cs}")
    def maxof(b, first=False):
        for i in range(0, 16, 2):
            if first and i == 0: A(f"v_max_f32 v2, v{b}, v{b+1}")
            else: A(f"v_max3_f32 v2, v{b+i}, v{b+i+1}, v2")
    A("s_waitcnt lgkmcnt(10)")
    smfma(0, v(MD, 16))
    A(f"v_mov_b32 v2, {NEG}")
    for d in range(1, 9):
        A(f"s_cmp_lt_u32 s19, {d}\ns_cbranch_scc1 P2_T1{'A' if (d-1)%2==0 else 'B'}")
        A(f"s_waitcnt lgkmcnt({10-d})")
        smfma(d, v(MF, 16) if d == 8 else "0")
        maxof(S(d-1))
    A.label("P2_T1A")
    maxof(SA)
    A("s_branch P2_M")
    A.label("P2_T1B")
    maxof(SB)
    A.label("P2_M")
    A(f"""v_mov_b32 v3, v2
    v_permlane32_swap_b32 v2, v3
    v_max_f32 v2, v2, v3""")
    for i in range(16):
        A(f"v_sub_f32 v{MD+i}, v{MD+i}, v2")
    smfma(0, v(MD, 16))
    for i in range(16):
        A(f"v_sub_f32 v{NM+i}, 0, v2")
    for i in range(16):
        A(f"v_sub_f32 v{MF+i}, v{MF+i}, v2")
    def tile(d, first):
        b = S(d); vb = VA if d % 2 == 0 else VB
        for i in range(8): A(f"v_exp_f32 v{b+i}, v{b+i}")
        for i in range(4): A(f"v_cvt_pk_bf16_f32 v{P0+i}, v{b+2*i}, v{b+2*i+1}")
        for i in range(8, 16): A(f"v_exp_f32 v{b+i}, v{b+i}")
        return b, vb
    def tile2(d, b, vb, first, wait):
        A(f"s_waitcnt lgkmcnt({wait})")
        A(f"v_mfma_f32_32x32x16_bf16 {v(O,16)}, {v(vb,4)}, {v(P0,4)}, {'0' if first else v(O,16)}")
        for i in range(4): A(f"v_cvt_pk_bf16_f32 v{P1+i}, v{b+8+2*i}, v{b+8+2*i+1}")
        A(f"v_mfma_f32_32x32x16_bf16 {v(O,16)}, {v(vb+4,4)}, {v(P1,4)}, {v(O,16)}")
    for i in range(16): A(f"v_mov_b32 v{O+i}, 0")
    for d in range(0, 8):
        A(f"s_cmp_lt_u32 s19, {d+1}\ns_cbranch_scc1 P2_T2{'A' if d%2==0 else 'B'}")
        smfma(d+1, v(MF, 16) if d+1 == 8 else v(NM, 16))
        vread(d+1)
        b, vb = tile(d, False)
        tile2(d, b, vb, False, 2)
    A.label("P2_T2A")
    b, vb = tile(0, False); tile2(0, b, vb, False, 0)
    A("s_branch P2_FIN")
    A.label("P2_T2B")
    b, vb = tile(1, False); tile2(1, b, vb, False, 0)
    A.label("P2_FIN")
    A(f"v_rcp_f32 v2, v{O+8}")
    for i in range(0, 8, 2):
        A(f"v_pk_mul_f32 {v(O+i,2)}, {v(O+i,2)}, {v(2,2)} op_sel_hi:[1,0]")
    for i in range(4):
        A(f"v_cvt_pk_bf16_f32 v{P0+i}, v{O+2*i}, v{O+2*i+1}")
    A(f"""s_lshl_b32 s16, s18, 5
    s_add_u32 s16, s16, s14
    s_lshl_b32 s16, s16, 10
    s_add_u32 s16, s16, {OF}
    buffer_store_dwordx4 {v(P0,4)}, v1, s[8:11], s16 offen""")
    A.label("P2_END")
    A("s_endpgm")

def main(out):
    A = Asm()
    k0(A); p1(A); p2(A)
    gemm64(A, "P3", 32, OF, WOF, False, [("p3a_kernel", XF0, X1F), ("p3b_kernel", X2F, X1F)])
    p4(A)
    gemm64(A, "P5", 112, HF, W2F, True, [("p5a_kernel", X1F, X2F), ("p5b_kernel", X1F, None)])
    L = [("k0_kernel", 249, 256, 1024)]
    for l in "ab":
        L += [(f"p1{l}_kernel", 256, 256, 99328), ("p2_kernel", 256, 512, 32768), (f"p3{l}_kernel", 256, 256, 49152),
              ("p4_kernel", 224, 256, 132096), (f"p5{l}_kernel", 256, 256, 49152)]
    hdr = open(f"cdna_kernels/{NAME}.s.ref").read().split("; Override")[0]
    hdr += "".join(f"; @launch kernel={k} grid=({g},1,1) block=({b},1,1) lds={l}\n" for k, g, b, l in L)
    hdr += '.amdgcn_target "amdgcn-amd-amdhsa--gfx950"\n.text\n'
    kd = '.section .rodata,"a"\n'
    kd += kdesc("k0_kernel", 128, 64)
    for n in ("p1a", "p1b", "p4"): kd += kdesc(n + "_kernel", 256, 64)
    kd += kdesc("p2_kernel", 168, 80)
    for n in ("p3a", "p3b", "p5a", "p5b"): kd += kdesc(n + "_kernel", 320, 64, 256)
    open(out, "w").write(hdr + A.text() + kd)
    print("nops inserted:", A.nops, file=sys.stderr)

main(sys.argv[1] if len(sys.argv) > 1 else f"cdna_kernels/{NAME}.s")
```

```python
import sys, struct
from asmlib import *

NAME = "interleave_layers__sliding_block__dense_activation_gelu__prompt"
def f2u(x): return "0x%08x" % struct.unpack("<I", struct.pack("<f", x))[0]

XF0, X1F, X2F, QF, KF, VF, OF, HF = 0x0, 0x200000, 0x400000, 0x600000, 0x800000, 0xA00000, 0xC00000, 0xE00000
WQF, WOF, W1F, W2F, TAB = 0x1500000, 0x1680000, 0x1700000, 0x18C0000, 0x1A80000
CSQ, TAB1, B2F = TAB, TAB + 0x2000, TAB + 0x6000
WS_USED = 0x1B00000
LOG2E = 1.4426950408889634
QSCALE = 0.25 * LOG2E
GA = -2.0 * LOG2E * 0.7978845608028654
GB = GA * 0.044715

import os
STAMP = os.environ.get('STAMP')
DBG = 0x2000000
class Stamps:
    def __init__(self): self.n = 0
    def __call__(self, A, tag):
        if STAMP != tag: return
        if self.n == 0: A("s_memrealtime s[98:99]")
        A(f"s_memtime s[{64+2*self.n}:{65+2*self.n}]\ns_waitcnt lgkmcnt(0)")
        self.n += 1
    def dump(self, A, tag):
        if STAMP != tag: return
        self(A, tag)
        A("s_memrealtime s[100:101]\ns_waitcnt lgkmcnt(0)")
        A("s_sub_u32 s100, s100, s98")
        A(f"s_lshl_b32 s62, s2, 3\ns_add_u32 s62, s62, s12\ns_lshl_b32 s62, s62, 7\ns_add_u32 s62, s62, {DBG}")
        A("v_mov_b32 v250, 0\ns_mov_b32 s10, 0x3000000")
        for i in range(self.n):
            A(f"s_sub_u32 s63, s{64+2*i}, s64\nv_mov_b32 v251, s63\nbuffer_store_dword v251, v250, s[8:11], s62 offen offset:{4*i}")
        A(f"v_mov_b32 v251, s100\nbuffer_store_dword v251, v250, s[8:11], s62 offen offset:124")
        A(f"v_mov_b32 v251, s64\nbuffer_store_dword v251, v250, s[8:11], s62 offen offset:120")
        A(f"v_mov_b32 v251, s98\nbuffer_store_dword v251, v250, s[8:11], s62 offen offset:116")
        A(f"s_getreg_b32 s63, hwreg(HW_REG_XCC_ID)\nv_mov_b32 v251, s63\nbuffer_store_dword v251, v250, s[8:11], s62 offen offset:112")
ST = Stamps()

class VM:
    def __init__(self, A): self.A = A; self.q = []
    def issue(self, text, tag=None):
        self.A(text); self.q.append(tag)
    def wait(self, tag, extra=""):
        idx = max(i for i, t in enumerate(self.q) if t == tag)
        n = len(self.q) - 1 - idx
        assert n <= 63
        self.A("s_waitcnt vmcnt(%d)%s" % (n, extra))
        self.q = self.q[idx + 1:]

def entry(A, name):
    A.raw(".globl %s\n.p2align 8\n.type %s,@function\n%s:" % (name, name, name))
    A.hist = []

def prologue(A, nwg, endl):
    A(f"""s_cmp_ge_u32 s2, {nwg}
    s_cbranch_scc1 {endl}
    s_load_dwordx2 s[4:5], s[0:1], 80
    v_and_b32 v1, 63, v0
    v_lshrrev_b32 v2, 6, v0
    v_lshlrev_b32 v1, 4, v1
    v_readfirstlane_b32 s12, v2
    s_mov_b32 s10, {WS_USED}
    s_mov_b32 s11, 0x00020000
    s_and_b32 s13, s2, 7
    s_lshr_b32 s14, s2, 3
    s_waitcnt lgkmcnt(0)
    s_mov_b32 s8, s4
    s_mov_b32 s9, s5""")

def k0(A):
    entry(A, "k0_kernel")
    A(f"""s_cmp_ge_u32 s2, 249
    s_cbranch_scc1 K0_END
    s_load_dwordx4 s[16:19], s[0:1], 0
    s_load_dwordx2 s[20:21], s[0:1], 16
    s_load_dwordx4 s[24:27], s[0:1], 32
    s_load_dwordx4 s[28:31], s[0:1], 48
    s_load_dwordx2 s[4:5], s[0:1], 80
    v_and_b32 v3, 63, v0
    v_lshrrev_b32 v2, 6, v0
    v_lshlrev_b32 v1, 4, v3
    v_readfirstlane_b32 s12, v2
    v_and_b32 v4, 31, v0
    v_bfe_u32 v5, v0, 5, 1
    s_mov_b32 s10, {WS_USED}
    s_mov_b32 s11, 0x00020000
    s_mov_b32 s35, 0x00020000
    s_waitcnt lgkmcnt(0)
    s_mov_b32 s8, s4
    s_mov_b32 s9, s5
    s_cmp_lt_u32 s2, 64
    s_cbranch_scc1 K0_X
    s_cmp_eq_u32 s2, 248
    s_cbranch_scc1 K0_B""")
    A(f"""s_cmp_lt_u32 s2, 112
    s_cbranch_scc1 K0_WQ
    s_cmp_lt_u32 s2, 128
    s_cbranch_scc1 K0_WO
    s_cmp_lt_u32 s2, 184
    s_cbranch_scc1 K0_W1
    s_mov_b32 s32, s28
    s_mov_b32 s33, s29
    s_mov_b32 s34, {1792*512*2}
    s_mov_b32 s36, 1024
    s_sub_u32 s37, s2, 184
    s_and_b32 s38, s37, 3
    s_mul_i32 s38, s38, 28
    s_lshr_b32 s37, s37, 2
    s_mov_b32 s39, 7
    s_mov_b32 s40, {W2F}
    s_mov_b32 s41, 112
    s_mov_b32 s42, 0
    s_branch K0_W""")
    A.label("K0_WQ")
    A(f"""s_mov_b32 s32, s18
    s_mov_b32 s33, s19
    s_mov_b32 s34, {512*1536*2}
    s_mov_b32 s36, 3072
    s_sub_u32 s37, s2, 64
    s_mov_b32 s38, 0
    s_mov_b32 s39, 8
    s_mov_b32 s40, {WQF}
    s_mov_b32 s41, 32
    s_lshl_b32 s42, s37, 7
    s_add_u32 s42, s42, {CSQ}
    s_branch K0_W""")
    A.label("K0_WO")
    A(f"""s_mov_b32 s32, s20
    s_mov_b32 s33, s21
    s_mov_b32 s34, {512*512*2}
    s_mov_b32 s36, 1024
    s_sub_u32 s37, s2, 112
    s_mov_b32 s38, 0
    s_mov_b32 s39, 8
    s_mov_b32 s40, {WOF}
    s_mov_b32 s41, 32
    s_mov_b32 s42, 0
    s_branch K0_W""")
    A.label("K0_W1")
    A(f"""s_mov_b32 s32, s24
    s_mov_b32 s33, s25
    s_mov_b32 s34, {512*1792*2}
    s_mov_b32 s36, 3584
    s_sub_u32 s37, s2, 128
    s_mov_b32 s38, 0
    s_mov_b32 s39, 8
    s_mov_b32 s40, {W1F}
    s_mov_b32 s41, 32
    s_lshr_b32 s42, s37, 2
    s_lshl_b32 s42, s42, 10
    s_and_b32 s43, s37, 3
    s_lshl_b32 s43, s43, 7
    s_add_u32 s42, s42, s43
    s_add_u32 s42, s42, {TAB1}""")
    A.label("K0_W")
    A(f"""s_mul_i32 s43, s12, s39
    s_add_u32 s43, s43, s38
    s_mul_i32 s44, s43, s36
    s_lshl_b32 s44, s44, 4
    s_lshl_b32 s45, s37, 6
    s_add_u32 s44, s44, s45
    s_mul_i32 s45, s37, s41
    s_add_u32 s45, s45, s43
    s_lshl_b32 s45, s45, 10
    s_add_u32 s45, s45, s40
    s_lshl_b32 s46, s36, 4
    v_lshlrev_b32 v6, 2, v5
    v_mul_lo_u32 v6, v6, s36
    v_lshl_add_u32 v6, v4, 1, v6""")
    for j in range(8):
        r = (j // 4) * 8 + j % 4
        A(f"s_mul_i32 s47, s36, {r}")
        A(f"v_add_u32 v{8+j}, s47, v6")
    A("v_mov_b32 v7, 0\nv_mov_b32 v16, 0x3f803f80")
    for ks in range(8):
        if ks == 7:
            A("s_cmp_eq_u32 s39, 7\ns_cbranch_scc1 K0_W7")
        for j in range(8):
            A(f"buffer_load_ushort v{32+ks*8+j}, v{8+j}, s[32:35], s44 offen")
        A("s_add_u32 s44, s44, s46")
    A.label("K0_W7")
    A("s_waitcnt vmcnt(0)")
    for ks in range(8):
        if ks == 7:
            A("s_cmp_eq_u32 s39, 7\ns_cbranch_scc1 K0_END")
        for d in range(4):
            A(f"v_lshl_or_b32 v{96+ks*4+d}, v{32+ks*8+2*d+1}, 16, v{32+ks*8+2*d}")
        for d in range(4):
            A(f"v_dot2_f32_bf16 v7, v{96+ks*4+d}, v16, v7")
        A(f"buffer_store_dwordx4 {v(96+ks*4,4)}, v1, s[8:11], s45 offen")
        A("s_add_u32 s45, s45, 1024")
    A(f"""s_cmp_eq_u32 s42, 0
    s_cbranch_scc1 K0_END
    v_mov_b32 v17, v7
    v_permlane32_swap_b32 v7, v17
    v_add_f32 v7, v7, v17
    v_lshlrev_b32 v18, 2, v0
    ds_write_b32 v18, v7
    s_waitcnt lgkmcnt(0)
    s_barrier
    s_cmp_lg_u32 s12, 0
    s_cbranch_scc1 K0_END
    ds_read_b32 v19, v18 offset:256
    ds_read_b32 v20, v18 offset:512
    ds_read_b32 v21, v18 offset:768
    s_waitcnt lgkmcnt(0)
    v_add_f32 v7, v7, v19
    v_add_f32 v20, v20, v21
    v_add_f32 v7, v7, v20
    v_lshlrev_b32 v18, 2, v4
    buffer_store_dword v7, v18, s[8:11], s42 offen
    s_endpgm""")
    A.label("K0_X")
    A(f"""s_mov_b32 s32, s16
    s_mov_b32 s33, s17
    s_mov_b32 s34, {2048*512*2}
    v_lshlrev_b32 v6, 10, v4
    v_lshl_add_u32 v6, v5, 3, v6
    s_lshl_b32 s44, s2, 15
    s_lshl_b32 s45, s12, 8
    s_add_u32 s44, s44, s45
    s_lshl_b32 s45, s2, 15
    s_lshl_b32 s46, s12, 13
    s_add_u32 s45, s45, s46
    s_add_u32 s45, s45, {XF0}""")
    for ks in range(8):
        A(f"buffer_load_dwordx2 {v(32+ks*4,2)}, v6, s[32:35], s44 offen offset:{ks*32}")
        A(f"buffer_load_dwordx2 {v(34+ks*4,2)}, v6, s[32:35], s44 offen offset:{ks*32+16}")
    A("s_waitcnt vmcnt(0)")
    for ks in range(8):
        A(f"buffer_store_dwordx4 {v(32+ks*4,4)}, v1, s[8:11], s45 offen")
        A("s_add_u32 s45, s45, 1024")
    A("s_endpgm")
    A.label("K0_B")
    A(f"""s_mov_b32 s32, s26
    s_mov_b32 s33, s27
    s_mov_b32 s34, {1792*2}
    v_lshlrev_b32 v6, 1, v0
    v_lshrrev_b32 v7, 7, v0
    v_lshlrev_b32 v7, 10, v7
    v_and_b32 v8, 127, v0
    v_lshl_add_u32 v7, v8, 2, v7
    s_mov_b32 s45, {TAB1 + 512}""")
    for i in range(7):
        A(f"buffer_load_ushort v{16+i}, v6, s[32:35], 0 offen offset:{i*512}")
    A("s_waitcnt vmcnt(0)")
    for i in range(7):
        A(f"v_lshlrev_b32 v{16+i}, 16, v{16+i}")
        A(f"buffer_store_dword v{16+i}, v7, s[8:11], s45 offen")
        A("s_add_u32 s45, s45, 2048")
    A(f"""s_mov_b32 s32, s30
    s_mov_b32 s33, s31
    s_mov_b32 s34, 1024
    v_lshlrev_b32 v7, 2, v0
    s_mov_b32 s45, {B2F}
    buffer_load_ushort v16, v6, s[32:35], 0 offen
    buffer_load_ushort v17, v6, s[32:35], 0 offen offset:512
    s_waitcnt vmcnt(0)
    v_lshlrev_b32 v16, 16, v16
    v_lshlrev_b32 v17, 16, v17
    buffer_store_dword v16, v7, s[8:11], s45 offen
    buffer_store_dword v17, v7, s[8:11], s45 offen offset:1024""")
    A.label("K0_END")
    A("s_endpgm")

def ln_stats(A, S0, S1, Q0, Q1, T0, T1):
    A(f"""v_add_f32 v{S0}, v{S0}, v{S1}
    v_add_f32 v{Q0}, v{Q0}, v{Q1}
    v_mov_b32 v{T0}, v{S0}
    v_mov_b32 v{T1}, v{Q0}
    v_permlane32_swap_b32 v{S0}, v{T0}
    v_permlane32_swap_b32 v{Q0}, v{T1}
    v_add_f32 v{S0}, v{S0}, v{T0}
    v_add_f32 v{Q0}, v{Q0}, v{T1}
    v_mul_f32 v{T0}, {f2u(1/512)}, v{S0}
    v_mul_f32 v{T1}, {f2u(1/512)}, v{Q0}
    v_fma_f32 v{T1}, -v{T0}, v{T0}, v{T1}
    v_max_f32 v{T1}, 0, v{T1}
    v_add_f32 v{T1}, {f2u(1e-5)}, v{T1}
    v_rsq_f32 v{S0}, v{T1}
    v_mul_f32 v{Q0}, v{T0}, v{S0}
    v_sub_f32 v{Q0}, 0, v{Q0}""")

def gemm128_main(A, vm, NB, ACC, XF, WR, swap_last, wsrc_stride, after_first_wait=None, PF=6, tag=None):
    NR = 8
    def issue_stage(st):
        for b in range(NB):
            A(f"s_add_u32 m0, s17, {(b*32+8*st)*1024}")
            A(f"s_add_u32 s18, s16, {b*wsrc_stride + st*8192}")
            vm.issue("buffer_load_dwordx4 v1, s[8:11], s18 offen lds", ("st", st))
            vm.issue("buffer_load_dwordx4 v1, s[8:11], s18 offen offset:1024 lds", ("st", st))
        for g in range(2):
            A(f"s_add_u32 s18, s15, {(st*8+g*4)*1024}")
            for q in range(4):
                ks = st*8 + g*4 + q
                vm.issue(f"buffer_load_dwordx4 {v(XF+ks*4,4)}, v1, s[8:11], s18 offen offset:{q*1024}", ("st", st))
    late = NB == 4
    ST(A, tag)
    for st in range(3 if late else 4): issue_stage(st)
    ST(A, tag)
    A("v_mov_b32 v3, 0x3f803f80\nv_mov_b32 v4, 0\nv_mov_b32 v5, 0\nv_mov_b32 v6, 0\nv_mov_b32 v7, 0")
    A("v_add_u32 v2, 0x10000, v1")
    frags = [(ks, b) for ks in range(32) for b in range(NB)]
    nf = len(frags)
    def rd(f):
        ks, b = frags[f]
        if b == 0 and ks % 8 == 0:
            vm.wait(("st", ks // 8))
            ST(A, tag)
            A("s_barrier")
            ST(A, tag)
            if ks == 0:
                if late: issue_stage(3)
                if after_first_wait: after_first_wait()
        off = (b*32 + ks)*1024
        base = "v1" if off < 65536 else "v2"
        A(f"ds_read_b128 {v(WR+(f%NR)*4,4)}, {base} offset:{off % 65536}")
    for f in range(PF): rd(f)
    for f in range(nf):
        ks, b = frags[f]
        A(f"s_waitcnt lgkmcnt({min(PF-1, nf-1-f)})")
        w = v(WR+(f%NR)*4, 4); x = v(XF+ks*4, 4); acc = v(ACC+b*16, 16)
        c = "0" if ks == 0 else acc
        if swap_last and b == NB-1: A(f"v_mfma_f32_32x32x16_bf16 {acc}, {x}, {w}, {c}")
        else: A(f"v_mfma_f32_32x32x16_bf16 {acc}, {w}, {x}, {c}")
        if f + PF < nf: rd(f + PF)
        dots = [(d, t) for d in range(4) for t in range(2)]
        lo, hi = (8*b)//NB, (8*(b+1))//NB
        for d, t in dots[lo:hi]:
            r = XF + ks*4 + d
            if t == 0: A(f"v_dot2_f32_bf16 v{4+(d&1)}, v{r}, v3, v{4+(d&1)}")
            else: A(f"v_dot2_f32_bf16 v{6+(d&1)}, v{r}, v{r}, v{6+(d&1)}")

def p1(A):
    entry(A, "p1a_kernel")
    A(f"s_mov_b32 s20, {XF0}\ns_branch P1_BODY")
    entry(A, "p1b_kernel")
    A(f"s_mov_b32 s20, {X2F}")
    A.label("P1_BODY")
    prologue(A, 256, "P1_END")
    ACC, XF, WR, CQ, CK = 16, 64, 192, 224, 240
    vm = VM(A)
    A(f"""s_and_b32 s21, s14, 1
    s_lshl_b32 s22, s13, 1
    s_add_u32 s21, s21, s22
    s_lshr_b32 s22, s14, 1
    s_lshl_b32 s21, s21, 2
    s_add_u32 s21, s21, s12
    s_lshl_b32 s15, s21, 15
    s_add_u32 s15, s15, s20
    s_lshl_b32 s17, s12, 11
    s_lshl_b32 s16, s22, 15
    s_add_u32 s16, s16, s17
    s_add_u32 s16, s16, {WQF}""")
    def extra():
        A(f"""v_bfe_u32 v8, v0, 5, 1
        v_lshlrev_b32 v9, 4, v8
        v_and_b32 v10, 31, v0
        v_lshlrev_b32 v11, 2, v10
        s_lshl_b32 s23, s22, 7
        s_add_u32 s23, s23, {CSQ}""")
        for g in range(4):
            vm.issue(f"buffer_load_dwordx4 {v(CQ+g*4,4)}, v9, s[8:11], s23 offen offset:{g*32}", "cs")
        for g in range(4):
            vm.issue(f"buffer_load_dwordx4 {v(CK+g*4,4)}, v9, s[8:11], s23 offen offset:{2048+g*32}", "cs")
        A("s_add_u32 s23, s23, 4096")
        vm.issue(f"buffer_load_dword v12, v11, s[8:11], s23 offen", "cs")
    gemm128_main(A, vm, 3, ACC, XF, WR, True, 16*32768, extra, tag='p1')
    ST(A, 'p1')
    ln_stats(A, 4, 5, 6, 7, 14, 15)
    A(f"""s_lshl_b32 s23, s12, 8
    s_add_u32 s23, s23, 98304
    v_add_u32 v11, s23, v11
    v_add_u32 v9, s23, v9
    ds_write_b32 v11, v4
    ds_write_b32 v11, v6 offset:128
    v_mul_f32 v14, {f2u(QSCALE)}, v4
    v_mul_f32 v2, {f2u(QSCALE)}, v6
    s_waitcnt lgkmcnt(0)""")
    RS, NM = XF, XF + 16
    for g in range(4):
        A(f"ds_read_b128 {v(RS+g*4,4)}, v9 offset:{g*32}")
        A(f"ds_read_b128 {v(NM+g*4,4)}, v9 offset:{128+g*32}")
    vm.wait("cs")
    A(f"""s_lshl_b32 s24, s22, 7
    s_add_u32 s24, s24, s21
    s_lshl_b32 s24, s24, 10""")
    P = XF + 32
    for b, (C, rr, nn, base) in enumerate(((CQ, 14, 2, QF), (CK, 4, 6, KF))):
        for i in range(0, 16, 2):
            A(f"v_pk_mul_f32 {v(C+i,2)}, {v(C+i,2)}, {v(nn,2)} op_sel_hi:[1,0]")
        for i in range(0, 16, 2):
            A(f"v_pk_fma_f32 {v(C+i,2)}, {v(ACC+b*16+i,2)}, {v(rr,2)}, {v(C+i,2)} op_sel_hi:[1,0,1]")
        for d in range(8):
            A(f"v_cvt_pk_bf16_f32 v{P+b*8+d}, v{C+2*d}, v{C+2*d+1}")
        A(f"s_add_u32 s25, s24, {base}")
        A(f"buffer_store_dwordx4 {v(P+b*8,4)}, v1, s[8:11], s25 offen")
        A(f"s_add_u32 s25, s24, {base + 65536}")
        A(f"buffer_store_dwordx4 {v(P+b*8+4,4)}, v1, s[8:11], s25 offen")
    A(f"""s_waitcnt lgkmcnt(0)
    v_lshrrev_b32 v9, 4, v10
    v_lshlrev_b32 v9, 16, v9
    v_and_b32 v10, 15, v10
    v_lshl_add_u32 v10, v8, 4, v10
    v_lshl_add_u32 v9, v10, 4, v9
    s_add_u32 s25, s24, {VF}""")
    for i in range(0, 16, 2):
        A(f"v_pk_mul_f32 {v(NM+i,2)}, {v(NM+i,2)}, {v(12,2)} op_sel_hi:[1,0]")
    for i in range(0, 16, 2):
        A(f"v_pk_fma_f32 {v(NM+i,2)}, {v(ACC+32+i,2)}, {v(RS+i,2)}, {v(NM+i,2)}")
    for d in range(8):
        A(f"v_cvt_pk_bf16_f32 v{P+16+d}, v{NM+2*d}, v{NM+2*d+1}")
    A(f"buffer_store_dwordx4 {v(P+16,4)}, v9, s[8:11], s25 offen")
    A(f"buffer_store_dwordx4 {v(P+20,4)}, v9, s[8:11], s25 offen offset:512")
    ST(A, 'p1')
    if STAMP == 'p1': A("s_waitcnt vmcnt(0)")
    ST.dump(A, 'p1')
    A.label("P1_END")
    A("s_endpgm")

def p4(A):
    entry(A, "p4_kernel")
    prologue(A, 224, "P4_END")
    ACC, XF, WR = 16, 80, 208
    vm = VM(A)
    A(f"""s_and_b32 s21, s14, 1
    s_lshl_b32 s22, s13, 1
    s_add_u32 s21, s21, s22
    s_lshr_b32 s22, s14, 1
    s_lshl_b32 s21, s21, 2
    s_add_u32 s21, s21, s12
    s_lshl_b32 s15, s21, 15
    s_add_u32 s15, s15, {X1F}
    s_lshl_b32 s17, s12, 11
    s_lshl_b32 s16, s22, 17
    s_add_u32 s16, s16, s17
    s_add_u32 s16, s16, {W1F}
    s_lshl_b32 s23, s22, 10
    s_add_u32 s23, s23, {TAB1}
    s_mov_b32 m0, 131072""")
    vm.issue("buffer_load_dwordx4 v1, s[8:11], s23 offen lds", ("st", 0))
    gemm128_main(A, vm, 4, ACC, XF, WR, False, 32768, tag='p4')
    ST(A, 'p4')
    ln_stats(A, 4, 5, 6, 7, 14, 15)
    A(f"""v_bfe_u32 v8, v0, 5, 1
    v_lshlrev_b32 v9, 4, v8
    v_add_u32 v9, 0x20000, v9
    v_mov_b32 v10, {f2u(GA)}
    v_mov_b32 v12, {f2u(GB)}
    s_mul_i32 s24, s21, 112
    s_lshl_b32 s25, s22, 3
    s_add_u32 s24, s24, s25
    s_lshl_b32 s24, s24, 10
    s_add_u32 s24, s24, {HF}""")
    CS = XF
    for b in range(4):
        for g in range(4):
            A(f"ds_read_b128 {v(CS+b*32+g*4,4)}, v9 offset:{b*128+g*32}")
            A(f"ds_read_b128 {v(CS+b*32+16+g*4,4)}, v9 offset:{512+b*128+g*32}")
        A("s_waitcnt lgkmcnt(0)")
    T = WR
    for b in range(4):
        C = CS + b*32; B = C + 16; acc = ACC + b*16
        for i in range(0, 16, 2):
            A(f"v_pk_fma_f32 {v(C+i,2)}, {v(C+i,2)}, {v(6,2)}, {v(B+i,2)} op_sel_hi:[1,0,1]")
        for i in range(0, 16, 2):
            A(f"v_pk_fma_f32 {v(acc+i,2)}, {v(acc+i,2)}, {v(4,2)}, {v(C+i,2)} op_sel_hi:[1,0,1]")
        for i in range(0, 16, 2):
            A(f"v_pk_mul_f32 {v(C+i,2)}, {v(acc+i,2)}, {v(acc+i,2)}")
        for i in range(0, 16, 2):
            A(f"v_pk_fma_f32 {v(C+i,2)}, {v(C+i,2)}, {v(12,2)}, {v(10,2)} op_sel_hi:[1,0,0]")
        for i in range(0, 16, 2):
            A(f"v_pk_mul_f32 {v(C+i,2)}, {v(C+i,2)}, {v(acc+i,2)}")
        for i in range(16):
            A(f"v_exp_f32 v{C+i}, v{C+i}")
        for i in range(0, 16, 2):
            A(f"v_pk_add_f32 {v(C+i,2)}, {v(C+i,2)}, 1.0 op_sel_hi:[1,0]")
        for i in range(16):
            A(f"v_rcp_f32 v{C+i}, v{C+i}")
        for i in range(0, 16, 2):
            A(f"v_pk_mul_f32 {v(C+i,2)}, {v(C+i,2)}, {v(acc+i,2)}")
        for d in range(8):
            A(f"v_cvt_pk_bf16_f32 v{T+b*8+d}, v{C+2*d}, v{C+2*d+1}")
        A(f"buffer_store_dwordx4 {v(T+b*8,4)}, v1, s[8:11], s24 offen offset:0")
        A(f"buffer_store_dwordx4 {v(T+b*8+4,4)}, v1, s[8:11], s24 offen offset:1024")
        if b < 3: A("s_add_u32 s24, s24, 2048")
    ST(A, 'p4')
    if STAMP == 'p4': A("s_waitcnt vmcnt(0)")
    ST.dump(A, 'p4')
    A.label("P4_END")
    A("s_endpgm")

def gemm64(A, tag, KS, ASRC, WSRC, bias, entries):
    for i, (name, res, out) in enumerate(entries):
        entry(A, name)
        A(f"s_mov_b32 s20, {res}\ns_mov_b32 s21, {out if out is not None else 0xffffffff}")
        if i + 1 < len(entries): A(f"s_branch {tag}_BODY")
    A.label(f"{tag}_BODY")
    A("s_load_dwordx2 s[6:7], s[0:1], 64")
    prologue(A, 256, f"{tag}_END")
    vm = VM(A)
    NS = KS // 4
    DEPTH = min(NS, 14)
    ACC = 0
    RING = 16
    RES, BIA = 4, 240
    A(f"""s_and_b32 s22, s14, 3
    s_lshl_b32 s23, s13, 2
    s_add_u32 s22, s22, s23
    s_lshl_b32 s22, s22, 1
    s_lshr_b32 s23, s14, 2
    s_lshl_b32 s23, s23, 1
    s_mul_i32 s24, s12, {NS*1024}
    s_mul_i32 s15, s22, {KS*1024}
    s_add_u32 s15, s15, s24
    s_add_u32 s15, s15, {ASRC}
    s_add_u32 s16, s15, {KS*1024}
    s_mul_i32 s17, s23, {KS*1024}
    s_add_u32 s17, s17, s24
    s_add_u32 s17, s17, {WSRC}
    s_add_u32 s18, s17, {KS*1024}""")
    def issue(st):
        r = RING + (st % DEPTH) * 16
        q = st % 4
        for i, sb in enumerate((15, 17, 16, 18)):
            vm.issue(f"buffer_load_dwordx4 {v(r+i*4,4)}, v1, s[8:11], s{sb} offen offset:{q*1024}", ("k", st))
        if q == 3:
            for sb in (15, 16, 17, 18): A(f"s_add_u32 s{sb}, s{sb}, 4096")
    ST(A, tag)
    for st in range(DEPTH): issue(st)
    ST(A, tag)
    A(f"""s_lshr_b32 s25, s12, 1
    s_add_u32 s25, s25, s22
    s_and_b32 s26, s12, 1
    s_add_u32 s26, s26, s23
    s_lshl_b32 s27, s25, 15
    s_lshl_b32 s28, s26, 11
    s_add_u32 s27, s27, s28
    s_add_u32 s28, s27, s20
    v_bfe_u32 v2, v0, 5, 1
    v_lshlrev_b32 v3, 4, v2
    s_lshl_b32 s29, s26, 7
    s_add_u32 s29, s29, {B2F}""")
    def late():
        vm.issue(f"buffer_load_dwordx4 {v(RES,4)}, v1, s[8:11], s28 offen", "res")
        vm.issue(f"buffer_load_dwordx4 {v(RES+4,4)}, v1, s[8:11], s28 offen offset:1024", "res")
        if bias:
            for g in range(4):
                vm.issue(f"buffer_load_dwordx4 {v(BIA+g*4,4)}, v3, s[8:11], s29 offen offset:{g*32}", "res")
    if DEPTH == NS: late()
    for st in range(NS):
        r = RING + (st % DEPTH) * 16
        vm.wait(("k", st))
        if st % 4 == 0 or st == NS-1: ST(A, tag)
        a0, w0, a1, w1 = (v(r+i*4, 4) for i in range(4))
        for t, (aa, ww) in enumerate(((a0, w0), (a0, w1), (a1, w0), (a1, w1))):
            acc = a(ACC + t*16, 16)
            A(f"v_mfma_f32_32x32x16_bf16 {acc}, {ww}, {aa}, {'0' if st == 0 else acc}")
        if st + DEPTH < NS:
            issue(st + DEPTH)
            if st + DEPTH == NS - 1: late()
    for w in range(4):
        if w < 3: A(f"s_cmp_lg_u32 s12, {w}\ns_cbranch_scc1 {tag}_W{w+1}")
        for d in range(1, 4):
            t = (w + d) & 3
            slot = (w - t - 1) & 3
            for q in range(4):
                A(f"ds_write_b128 v1, {a(ACC+t*16+q*4,4)} offset:{(t*3+slot)*4096+q*1024}")
        for i in range(16):
            A(f"v_accvgpr_read_b32 v{16+i}, a{ACC+w*16+i}")
        if w < 3:
            A(f"s_branch {tag}_RED")
            A.label(f"{tag}_W{w+1}")
    A.label(f"{tag}_RED")
    ST(A, tag)
    A(f"""s_mul_i32 s30, s12, 12288
    v_add_u32 v12, s30, v1
    s_waitcnt lgkmcnt(0)
    s_barrier""")
    for sl in range(3):
        for q in range(4):
            A(f"ds_read_b128 {v(32+sl*16+q*4,4)}, v12 offset:{sl*4096+q*1024}")
    ST(A, tag)
    vm.wait("res")
    for d in range(8):
        A(f"v_lshlrev_b32 v{80+2*d}, 16, v{RES+d}")
        A(f"v_and_b32 v{81+2*d}, 0xffff0000, v{RES+d}")
    for i in range(0, 16, 2):
        A(f"v_pk_add_f32 {v(16+i,2)}, {v(16+i,2)}, {v(80+i,2)}")
    if bias:
        for i in range(0, 16, 2):
            A(f"v_pk_add_f32 {v(16+i,2)}, {v(16+i,2)}, {v(BIA+i,2)}")
    for sl in range(3):
        A(f"s_waitcnt lgkmcnt({8-4*sl})")
        for i in range(0, 16, 2):
            A(f"v_pk_add_f32 {v(16+i,2)}, {v(16+i,2)}, {v(32+sl*16+i,2)}")
    for d in range(8):
        A(f"v_cvt_pk_bf16_f32 v{96+d}, v{16+2*d}, v{16+2*d+1}")
    if any(e[2] is None for e in entries):
        A(f"s_cmp_eq_u32 s21, -1\ns_cbranch_scc1 {tag}_FIN")
    A(f"""s_add_u32 s27, s27, s21
    buffer_store_dwordx4 {v(96,4)}, v1, s[8:11], s27 offen
    buffer_store_dwordx4 {v(100,4)}, v1, s[8:11], s27 offen offset:1024""")
    ST(A, tag)
    if STAMP == tag: A("s_waitcnt vmcnt(0)")
    ST.dump(A, tag)
    A("s_endpgm")
    if any(e[2] is None for e in entries):
        A.label(f"{tag}_FIN")
        A(f"""s_mov_b32 s32, s6
        s_mov_b32 s33, s7
        s_mov_b32 s34, {2048*512*2}
        s_mov_b32 s35, 0x00020000
        v_permlane32_swap_b32 v96, v98
        v_permlane32_swap_b32 v97, v99
        v_permlane32_swap_b32 v100, v102
        v_permlane32_swap_b32 v101, v103
        v_and_b32 v12, 31, v0
        v_lshlrev_b32 v12, 10, v12
        v_add_u32 v12, v12, v3
        s_lshl_b32 s27, s25, 15
        s_lshl_b32 s28, s26, 6
        s_add_u32 s27, s27, s28
        buffer_store_dwordx4 {v(96,4)}, v12, s[32:35], s27 offen
        buffer_store_dwordx4 {v(100,4)}, v12, s[32:35], s27 offen offset:32""")
    A.label(f"{tag}_END")
    A("s_endpgm")

def p2(A):
    entry(A, "p2_kernel")
    prologue(A, 256, "P2_END")
    Q, KR, SA, SB, MD, MF, NM, O, VA, VB, P0, P1 = 4, 8, 48, 64, 80, 96, 112, 128, 144, 152, 160, 164
    NEG = f2u(-1e30)
    ST(A, 'p2')
    A(f"""s_lshl_b32 s15, s14, 6
    s_lshl_b32 s16, s13, 3
    s_add_u32 s15, s15, s16
    s_add_u32 s16, s15, s12
    s_lshl_b32 s16, s16, 10
    s_add_u32 s16, s16, {QF}
    buffer_load_dwordx4 {v(Q,4)}, v1, s[8:11], s16 offen
    s_lshl_b32 s17, s12, 1
    s_add_u32 s15, s15, s17
    s_lshl_b32 s15, s15, 10
    s_lshl_b32 s17, s12, 11
    s_lshl_b32 s18, s13, 3
    s_add_u32 s18, s18, s12
    s_min_u32 s19, s18, 8
    s_cmp_lt_u32 s18, 4
    s_cbranch_scc1 P2_NOLD
    s_mov_b32 m0, s17
    s_add_u32 s16, s15, {KF - 8192}
    buffer_load_dwordx4 v1, s[8:11], s16 offen lds
    buffer_load_dwordx4 v1, s[8:11], s16 offen offset:1024 lds
    s_add_u32 m0, s17, 16384
    s_add_u32 s16, s15, {VF - 8192}
    buffer_load_dwordx4 v1, s[8:11], s16 offen lds
    buffer_load_dwordx4 v1, s[8:11], s16 offen offset:1024 lds""")
    A.label("P2_NOLD")
    A(f"""v_and_b32 v2, 31, v0
    v_bfe_u32 v3, v0, 5, 1
    v_lshlrev_b32 v44, 2, v3
    v_sub_u32 v44, v2, v44
    v_mov_b32 v45, {NEG}""")
    for i in range(16):
        A(f"v_cmp_le_i32 {s(32+2*i,2)}, {8*(i//4)+i%4}, v44")
    for i in range(16):
        A(f"v_cndmask_b32 v{MD+i}, v45, 0, {s(32+2*i,2)}")
        A(f"v_cndmask_b32 v{MF+i}, 0, v45, {s(32+2*i,2)}")
    for i in range(16):
        A(f"v_mov_b32 v{VA+i}, 0x3f803f80")
    A(f"""s_lshl_b32 s17, s12, 10
    v_add_u32 v46, s17, v1
    v_and_b32 v47, 15, v0
    v_lshl_add_u32 v47, v3, 4, v47
    v_lshlrev_b32 v47, 4, v47
    v_add_u32 v47, s17, v47
    s_mov_b32 s20, 0x0000ffff
    s_mov_b32 s21, 0x0000ffff""")
    ST(A, 'p2')
    A("s_waitcnt vmcnt(0)")
    ST(A, 'p2')
    A("s_barrier")
    ST(A, 'p2')
    for d in range(9):
        A(f"ds_read_b128 {v(KR+d*4,4)}, v46 offset:{(8-d)*1024}")
    def vread(d):
        b = VA if d % 2 == 0 else VB
        A("s_mov_b64 exec, s[20:21]")
        A(f"ds_read_b128 {v(b,4)}, v47 offset:{16384+(8-d)*1024}")
        A(f"ds_read_b128 {v(b+4,4)}, v47 offset:{16384+(8-d)*1024+512}")
        A("s_mov_b64 exec, -1")
    vread(0)
    S = lambda d: SA if d % 2 == 0 else SB
    def smfma(d, cs):
        A(f"v_mfma_f32_32x32x16_bf16 {v(S(d),16)}, {v(KR+d*4,4)}, {v(Q,4)}, {cs}")
    def maxof(b, first=False):
        for i in range(0, 16, 2):
            if first and i == 0: A(f"v_max_f32 v2, v{b}, v{b+1}")
            else: A(f"v_max3_f32 v2, v{b+i}, v{b+i+1}, v2")
    A("s_waitcnt lgkmcnt(10)")
    smfma(0, v(MD, 16))
    A(f"v_mov_b32 v2, {NEG}")
    for d in range(1, 9):
        A(f"s_cmp_lt_u32 s19, {d}\ns_cbranch_scc1 P2_T1{'A' if (d-1)%2==0 else 'B'}")
        A(f"s_waitcnt lgkmcnt({10-d})")
        smfma(d, v(MF, 16) if d == 8 else "0")
        maxof(S(d-1))
    A.label("P2_T1A")
    maxof(SA)
    A("s_branch P2_M")
    A.label("P2_T1B")
    maxof(SB)
    A.label("P2_M")
    ST(A, 'p2')
    A(f"""v_mov_b32 v3, v2
    v_permlane32_swap_b32 v2, v3
    v_max_f32 v2, v2, v3""")
    for i in range(16):
        A(f"v_sub_f32 v{MD+i}, v{MD+i}, v2")
    smfma(0, v(MD, 16))
    for i in range(16):
        A(f"v_sub_f32 v{NM+i}, 0, v2")
    for i in range(16):
        A(f"v_sub_f32 v{MF+i}, v{MF+i}, v2")
    def tile(d, first):
        b = S(d); vb = VA if d % 2 == 0 else VB
        for i in range(8): A(f"v_exp_f32 v{b+i}, v{b+i}")
        for i in range(4): A(f"v_cvt_pk_bf16_f32 v{P0+i}, v{b+2*i}, v{b+2*i+1}")
        for i in range(8, 16): A(f"v_exp_f32 v{b+i}, v{b+i}")
        return b, vb
    def tile2(d, b, vb, first, wait):
        A(f"s_waitcnt lgkmcnt({wait})")
        A(f"v_mfma_f32_32x32x16_bf16 {v(O,16)}, {v(vb,4)}, {v(P0,4)}, {'0' if first else v(O,16)}")
        for i in range(4): A(f"v_cvt_pk_bf16_f32 v{P1+i}, v{b+8+2*i}, v{b+8+2*i+1}")
        A(f"v_mfma_f32_32x32x16_bf16 {v(O,16)}, {v(vb+4,4)}, {v(P1,4)}, {v(O,16)}")
    for i in range(16): A(f"v_mov_b32 v{O+i}, 0")
    ST(A, 'p2')
    for d in range(0, 8):
        A(f"s_cmp_lt_u32 s19, {d+1}\ns_cbranch_scc1 P2_T2{'A' if d%2==0 else 'B'}")
        smfma(d+1, v(MF, 16) if d+1 == 8 else v(NM, 16))
        vread(d+1)
        b, vb = tile(d, False)
        tile2(d, b, vb, False, 2)
    A.label("P2_T2A")
    b, vb = tile(0, False); tile2(0, b, vb, False, 0)
    A("s_branch P2_FIN")
    A.label("P2_T2B")
    b, vb = tile(1, False); tile2(1, b, vb, False, 0)
    A.label("P2_FIN")
    ST(A, 'p2')
    A(f"v_rcp_f32 v2, v{O+8}")
    for i in range(0, 8, 2):
        A(f"v_pk_mul_f32 {v(O+i,2)}, {v(O+i,2)}, {v(2,2)} op_sel_hi:[1,0]")
    for i in range(4):
        A(f"v_cvt_pk_bf16_f32 v{P0+i}, v{O+2*i}, v{O+2*i+1}")
    A(f"""s_lshl_b32 s16, s18, 5
    s_add_u32 s16, s16, s14
    s_lshl_b32 s16, s16, 10
    s_add_u32 s16, s16, {OF}
    buffer_store_dwordx4 {v(P0,4)}, v1, s[8:11], s16 offen""")
    ST(A, 'p2')
    if STAMP == 'p2': A("s_waitcnt vmcnt(0)")
    ST.dump(A, 'p2')
    A.label("P2_END")
    A("s_endpgm")

def main(out):
    A = Asm()
    k0(A); p1(A); p2(A)
    gemm64(A, "P3", 32, OF, WOF, False, [("p3a_kernel", XF0, X1F), ("p3b_kernel", X2F, X1F)])
    p4(A)
    gemm64(A, "P5", 112, HF, W2F, True, [("p5a_kernel", X1F, X2F), ("p5b_kernel", X1F, None)])
    L = [("k0_kernel", 249, 256, 1024)]
    for l in "ab":
        L += [(f"p1{l}_kernel", 256, 256, 99328), ("p2_kernel", 256, 512, 32768), (f"p3{l}_kernel", 256, 256, 49152),
              ("p4_kernel", 224, 256, 132096), (f"p5{l}_kernel", 256, 256, 49152)]
    hdr = open(f"cdna_kernels/{NAME}.s.ref").read().split("; Override")[0]
    hdr += "".join(f"; @launch kernel={k} grid=({g},1,1) block=({b},1,1) lds={l}\n" for k, g, b, l in L)
    hdr += '.amdgcn_target "amdgcn-amd-amdhsa--gfx950"\n.text\n'
    kd = '.section .rodata,"a"\n'
    kd += kdesc("k0_kernel", 128, 64)
    for n in ("p1a", "p1b", "p4"): kd += kdesc(n + "_kernel", 256, 102)
    kd += kdesc("p2_kernel", 256 if STAMP else 168, 102)
    for n in ("p3a", "p3b", "p5a", "p5b"): kd += kdesc(n + "_kernel", 320, 102, 256)
    open(out, "w").write(hdr + A.text() + kd)
    print("nops inserted:", A.nops, file=sys.stderr)

main(sys.argv[1] if len(sys.argv) > 1 else f"cdna_kernels/{NAME}.s")
```
